```python
import torch

def _softmax(x, axis=-1):
    return torch.softmax(x, dim=axis)
def _gelu(x):
    return torch.nn.functional.gelu(x, approximate="tanh")
def _silu(x):
    return torch.nn.functional.silu(x)
def _sigmoid(x):
    return torch.sigmoid(x)
def _layernorm(x, axis=-1, eps=1e-5):
    m = x.mean(dim=axis, keepdim=True)
    v = x.var(dim=axis, keepdim=True, unbiased=False)
    return (x - m) / torch.sqrt(v + eps)
def _scatter_add(tgt, idx, src, axis=0):
    return tgt.clone().index_add_(axis, idx, src)
def _segment_sum(src, seg, n):
    out = torch.zeros((n,) + src.shape[1:], dtype=src.dtype)
    return out.index_add_(0, seg, src)
def _pad(x, pw):
    flat = tuple(v for pair in reversed(pw) for v in pair)
    return torch.nn.functional.pad(x, flat)

kernel_name = 'interleave_layers__mha_block__mixer_s_mlp__prompt'

def setup_inputs():

    _w = (lambda a: (lambda t: t.to(torch.bfloat16) if t.is_floating_point() else t)(torch.as_tensor(a)))
    def _A_setup():
        B, S, D, H = 1, 2048, 448, 16
        return {
            "x": _w((lambda *s: torch.randn(*s, dtype=torch.bfloat16) * 0.05)(B, S, D)),
            "wqkv": _w((lambda *s: torch.randn(*s, dtype=torch.bfloat16) * 0.05)(D, 3 * D)),
            "wo": _w((lambda *s: torch.randn(*s, dtype=torch.bfloat16) * 0.05)(D, D)),
        }
    _A_in = _A_setup()

    def _B_setup():
        B, S, D, F = 1, 2048, 448, 1792
        return {
            "x":  _w((lambda *s: torch.randn(*s, dtype=torch.bfloat16) * 0.05)(B, S, D)),
            "w1": _w((lambda *s: torch.randn(*s, dtype=torch.bfloat16) * 0.8)(D, D) * (D ** -0.5)),
            "w2": _w((lambda *s: torch.randn(*s, dtype=torch.bfloat16) * 0.8)(D, D) * (D ** -0.5)),
            "w3": _w((lambda *s: torch.randn(*s, dtype=torch.bfloat16) * 0.8)(D, F) * (D ** -0.5)),
            "w4": _w((lambda *s: torch.randn(*s, dtype=torch.bfloat16) * 0.8)(F, D) * (F ** -0.5)),
        }
    _B_in = _B_setup()

    return {
        "A_x": _A_in["x"],
        "A_wqkv": _A_in["wqkv"],
        "A_wo": _A_in["wo"],
        "B_x": _B_in["x"],
        "B_w1": _B_in["w1"],
        "B_w2": _B_in["w2"],
        "B_w3": _B_in["w3"],
        "B_w4": _B_in["w4"],
    }

def reference(A_x, A_wqkv, A_wo, B_x, B_w1, B_w2, B_w3, B_w4):
    def _A_ref(x, wqkv, wo):
        B, S, D = x.shape
        H = 16
        Dh = D // H
        qkv = (lambda x, *d: x.permute(*d))((x @ wqkv).reshape(B, S, 3, H, Dh), 2, 0, 3, 1, 4)
        q, k, v = qkv[0], qkv[1], qkv[2]
        scores = torch.einsum("bhqd,bhkd->bhqk", q, k) * (Dh ** -0.5)
        p = _softmax(scores, axis=-1)
        o = torch.einsum("bhqk,bhkd->bhqd", p, v)
        return (lambda x, *d: x.permute(*d))(o, 0, 2, 1, 3).reshape(B, S, D) @ wo

    def _B_ref(x, w1, w2, w3, w4):
        B, S, D = x.shape
        h = _gelu(_layernorm(x, axis=-1) @ w1)
        c = D // 4
        g0 = _pad(h[:, :, 0*c:1*c], ((0, 0), (1, 0), (0, 0)))[:, :S, :]
        g1 = _pad(h[:, :, 1*c:2*c], ((0, 0), (0, 1), (0, 0)))[:, 1:, :]
        g2 = _pad(h[:, :, 2*c:3*c], ((0, 0), (2, 0), (0, 0)))[:, :S, :]
        g3 = _pad(h[:, :, 3*c:   ], ((0, 0), (0, 2), (0, 0)))[:, 2:, :]
        hs = torch.concatenate([g0, g1, g2, g3], axis=-1) @ w2
        x1 = x + hs
        h2 = _gelu(_layernorm(x1, axis=-1) @ w3) @ w4
        return x1 + h2

    x = A_x
    x = x + _A_ref(_layernorm(x, axis=-1), A_wqkv, A_wo)
    x = x + _B_ref(_layernorm(x, axis=-1), B_w1, B_w2, B_w3, B_w4)
    x = x + _A_ref(_layernorm(x, axis=-1), A_wqkv, A_wo)
    x = x + _B_ref(_layernorm(x, axis=-1), B_w1, B_w2, B_w3, B_w4)
    return x
```

```python
import re

TRANS = ("v_exp_f32", "v_log_f32", "v_rcp_f32", "v_rsq_f32", "v_sqrt_f32", "v_sin_f32", "v_cos_f32", "v_rcp_iflag_f32")
_REG = re.compile(r"^(-?)(?:abs\()?([vas])(?:(\d+)|\[(\d+):(\d+)\])\)?$")


def regs_of(tok):
    tok = tok.strip()
    if tok.startswith("|") and tok.endswith("|"):
        tok = tok[1:-1]
    m = _REG.match(tok)
    if m:
        k = m.group(2)
        if m.group(3) is not None:
            return [(k, int(m.group(3)))]
        return [(k, i) for i in range(int(m.group(4)), int(m.group(5)) + 1)]
    if tok == "vcc":
        return [("s", "vcc_lo"), ("s", "vcc_hi")]
    if tok in ("vcc_lo", "vcc_hi", "m0", "exec_lo", "exec_hi"):
        return [("s", tok)]
    if tok == "exec":
        return [("s", "exec_lo"), ("s", "exec_hi")]
    return []


def R(k, lo, n=1):
    return f"{k}{lo}" if n == 1 else f"{k}[{lo}:{lo+n-1}]"


def v(lo, n=1): return R("v", lo, n)
def a(lo, n=1): return R("a", lo, n)
def s(lo, n=1): return R("s", lo, n)


class Ins:
    def __init__(self, text):
        self.text = text
        t = text.split(";")[0].strip()
        parts = t.split(None, 1)
        self.op = parts[0]
        rest = parts[1] if len(parts) > 1 else ""
        ops, cur, depth = [], "", 0
        for ch in rest:
            if ch in "[(":
                depth += 1
            if ch in "])":
                depth -= 1
            if ch == "," and depth == 0:
                ops.append(cur.strip()); cur = ""
            else:
                cur += ch
        if cur.strip():
            ops.append(cur.strip())
        self.mods = []
        if ops:
            last = ops[-1].split()
            ops[-1] = last[0]
            self.mods = last[1:]
        self.ops = ops
        op = self.op
        rr = [regs_of(o) for o in ops]
        flat = lambda l: [x for y in l for x in y]
        self.kind = None
        self.w, self.r = [], []
        self.A = self.B = self.C = []
        self.data = []
        if op.startswith("v_mfma"):
            self.kind = "mfma"
            self.w = rr[0]; self.A, self.B, self.C = rr[1], rr[2], rr[3]
            self.r = self.A + self.B + self.C
            self.passes = 8 if "32x32x16" in op else 4
            assert "32x32x16" in op or "16x16x32" in op
        elif op.startswith("v_"):
            self.kind = "valu"
            if op.startswith("v_permlane") and "swap" in op:
                self.w = rr[0] + rr[1]; self.r = rr[0] + rr[1]
            elif op == "v_nop":
                pass
            elif op.startswith(("v_add_co", "v_sub_co", "v_addc_co", "v_subb_co")):
                self.w = rr[0] + rr[1]; self.r = flat(rr[2:])
            else:
                self.w = rr[0]; self.r = flat(rr[1:])
                if op.startswith(("v_fmac", "v_pk_fmac", "v_dot2c", "v_writelane")) or "UNUSED_PRESERVE" in text:
                    self.r = self.r + rr[0]
            self.trans = op.replace("_e32", "").replace("_e64", "") in TRANS
            self.dpp = any(m.startswith(("row_", "quad_perm", "wave_")) for m in self.mods) or op.endswith("_dpp")
        elif op.startswith("ds_"):
            self.kind = "ds"
            if op.startswith(("ds_read", "ds_bpermute", "ds_permute", "ds_swizzle")) or "_rtn" in op:
                self.w = rr[0]; self.r = flat(rr[1:])
            else:
                self.r = flat(rr)
        elif op.startswith(("buffer_load", "global_load")):
            self.kind = "vmem"
            if "lds" in self.mods or "_lds_" in op:
                self.r = flat(rr) + [("s", "m0")]
                self.dma = True
            else:
                self.w = rr[0]; self.r = flat(rr[1:])
        elif op.startswith(("buffer_store", "buffer_atomic")):
            self.kind = "vmem"
            self.r = flat(rr); self.data = rr[0]
            if op.startswith("buffer_atomic") and "sc0" in self.mods:
                self.w = rr[0]
        elif op.startswith("global_store"):
            self.kind = "vmem"
            self.r = flat(rr); self.data = rr[1]
        elif op.startswith(("s_load", "s_memtime", "s_memrealtime", "s_buffer_load")):
            self.kind = "smem"
            self.w = rr[0]; self.r = flat(rr[1:])
        elif op.startswith("s_"):
            self.kind = "salu"
            if op.startswith(("s_cmp", "s_cbranch", "s_branch", "s_waitcnt", "s_barrier", "s_nop", "s_endpgm",
                              "s_sleep", "s_setprio", "s_bitcmp", "s_setpc")):
                self.r = flat(rr)
                if op in ("s_cbranch_vccz", "s_cbranch_vccnz"):
                    self.r = regs_of("vcc")
            else:
                self.w = rr[0] if rr else []; self.r = flat(rr[1:])
                if "saveexec" in op:
                    self.w = self.w + regs_of("exec")
                if op.startswith(("s_addk", "s_mulk", "s_cmov", "s_bitset")):
                    self.r = self.r + rr[0]
        else:
            raise ValueError("unknown instruction " + text)


class Emit:
    def __init__(self):
        self.out = []
        self.reset()
        self.nops = 0

    def reset(self):
        self.slot = 0
        self.hist = []
        self.vm = []
        self.lg = []

    def raw(self, text):
        self.out.append(text)

    def label(self, name):
        self.out.append(name + ":")

    def comment(self, t):
        self.out.append("; " + t)

    def _put(self, text, n=1):
        self.out.append("    " + text)
        self.slot += n

    def nop(self, n):
        while n > 0:
            k = min(n, 16)
            self._put(f"s_nop {k-1}", k)
            self.nops += k
            n -= k

    def wait(self, vm=None, lg=None):
        parts = []
        if vm is not None:
            vm = min(vm, 63)
            if len(self.vm) > vm:
                parts.append(f"vmcnt({vm})")
                self.vm = self.vm[len(self.vm) - vm:] if vm else []
        if lg is not None:
            if any(x[2] for x in self.lg):
                lg = 0
            lg = min(lg, 15)
            if len(self.lg) > lg:
                parts.append(f"lgkmcnt({lg})")
                self.lg = self.lg[len(self.lg) - lg:] if lg else []
        if parts:
            self._put("s_waitcnt " + " ".join(parts))

    def force_wait(self, vm=None, lg=None):
        parts = []
        if vm is not None:
            parts.append(f"vmcnt({vm})")
            self.vm = self.vm[max(0, len(self.vm) - vm):] if vm else []
        if lg is not None:
            parts.append(f"lgkmcnt({lg})")
            self.lg = self.lg[max(0, len(self.lg) - lg):] if lg else []
        self._put("s_waitcnt " + " ".join(parts))

    def wait_tag(self, *tags):
        vi = max([i for i, x in enumerate(self.vm) if x[1] in tags], default=None)
        li = max([i for i, x in enumerate(self.lg) if x[1] in tags], default=None)
        self.wait(vm=None if vi is None else len(self.vm) - 1 - vi, lg=None if li is None else len(self.lg) - 1 - li)

    def settle(self):
        need = 0
        for sl, p in self.hist:
            d = self.slot - sl - 1
            if p.kind == "mfma":
                need = max(need, (12 if p.passes == 8 else 8) - d)
            elif p.kind == "valu":
                need = max(need, (5 if any(x[0] == "s" for x in p.w) else 3) - d)
            elif p.kind in ("salu", "vmem"):
                need = max(need, 2 - d)
        self.nop(need)

    def _hazard(self, c):
        need = 0
        cr, cw = set(c.r), set(c.w)
        for sl, p in self.hist:
            d = self.slot - sl - 1
            req = 0
            pw = set(p.w)
            if p.kind == "valu":
                vw = {x for x in pw if x[0] in "va"}
                sw = {x for x in pw if x[0] == "s"}
                if c.kind == "mfma" and vw & cr:
                    req = max(req, 2)
                if c.kind == "valu":
                    if p.trans and not c.trans and vw & cr:
                        req = max(req, 1)
                    if c.op.startswith("v_permlane") and vw & cr:
                        req = max(req, 2)
                    if c.op.startswith(("v_readlane", "v_readfirstlane")) and vw & cr:
                        req = max(req, 1)
                    if c.dpp and vw & cr:
                        req = max(req, 2)
                    if sw & cr:
                        req = max(req, 4 if c.op.startswith(("v_readlane", "v_writelane")) else 2)
                    if ("sdwa" in p.op or any(m.startswith("dst_sel") for m in p.mods)) and vw & (cr | cw):
                        req = max(req, 1)
                if p.op.startswith("v_dot") and vw & (cr | cw):
                    same_acc = c.op == p.op and set(c.w) == pw and not (vw & set(regs_of(c.ops[1]) + regs_of(c.ops[2])))
                    if not same_acc:
                        req = max(req, 3)
                if c.kind == "vmem" and sw & cr:
                    req = max(req, 5)
                if c.kind in ("salu", "smem") and sw & cr:
                    req = max(req, 1)
                if p.trans and c.kind in ("vmem", "ds") and vw & cr:
                    req = max(req, 1)
            elif p.kind == "mfma":
                big = p.passes == 8
                if c.kind == "mfma":
                    if pw & set(c.A + c.B):
                        req = max(req, 12 if big else 8)
                    if pw & set(c.C):
                        if not (c.C == p.w and c.passes == p.passes):
                            req = max(req, 10 if big else 6)
                    elif pw & cw:
                        req = max(req, 10 if big else 6)
                elif c.kind in ("valu", "vmem", "ds"):
                    if pw & (cr | cw):
                        req = max(req, 12 if big else 8)
                    if set(p.C) & cw:
                        req = max(req, 7 if big else 3)
            elif p.kind == "salu":
                if ("s", "m0") in pw and c.kind in ("vmem", "ds") and ("s", "m0") in cr:
                    req = max(req, 1)
            elif p.kind == "vmem":
                if len(p.data) >= 3 and set(p.data) & cw:
                    req = max(req, 2)
            need = max(need, req - d)
        return need

    def __call__(self, text, tag=None):
        c = Ins(text)
        acc = set(c.r) | set(c.w)
        vi = max([i for i, x in enumerate(self.vm) if x[0] & acc], default=None)
        li = max([i for i, x in enumerate(self.lg) if x[0] & acc], default=None)
        self.wait(vm=None if vi is None else len(self.vm) - 1 - vi, lg=None if li is None else len(self.lg) - 1 - li)
        n = self._hazard(c)
        if n > 0:
            self.nop(n)
        if c.op == "s_nop":
            self._put(text, int(c.ops[0]) + 1)
            return
        self.hist.append((self.slot, c))
        self.hist = [h for h in self.hist if self.slot - h[0] < 24]
        self._put(text)
        if c.kind == "vmem":
            self.vm.append((set(c.w), tag))
        elif c.kind == "ds":
            self.lg.append((set(c.w), tag, False))
        elif c.kind == "smem":
            self.lg.append((set(c.w), tag, True))

    def text(self):
        return "\n".join(self.out) + "\n"


def cost(text):
    op = text.split()[0]
    if op.startswith("v_mfma"):
        return 8
    if op in TRANS:
        return 8
    return 4


def weave(e, main, fill, budget):
    fill = list(fill)
    credit = 0
    for grp in main:
        for x in grp:
            put(e, x)
        credit += budget
        while fill and credit > 0:
            x = fill.pop(0)
            put(e, x)
            credit -= 0 if callable(x) else cost(x if isinstance(x, str) else x[0])
    return fill


def put(e, x):
    if callable(x):
        x()
    elif isinstance(x, str):
        e(x)
    else:
        e(x[0], tag=x[1])
```

```python
from emit import *
from layout import *
from k_prep import srd, code_prefetch, fl, f2u

QR = [16, 24, 32, 40]
OA = [48, 64, 80, 96]
SB = [112, 128]
PB = [144, 152]
TB_ = [160, 176, 192]
MX = 208
ATT_LDS = 49152 + 2048 + 64


def tile_seq():
    seq = []
    for kt in range(16):
        seq += [(0, kt), (1, kt)]
    seq += [(2, kt) for kt in range(16)]
    seq += [(3, kt) for kt in range(16)]
    return seq


def kv_loads(kt):
    return [f"buffer_load_dwordx4 {a(16*kt+4*f,4)}, v1, s[4:7], s{40+kt} offen offset:{1024*f}" for f in range(4)]


def gen_attn(e, cfg):
    e.reset()
    e.label("attn_kernel")
    e("s_cmp_ge_u32 s2, 256")
    e("s_cbranch_scc1 La_end")
    e("s_load_dwordx2 s[56:57], s[0:1], 80")
    code_prefetch(e, "attn_kernel", cfg.get("attn_bytes", 12288), 4, 5, 60)
    e("v_lshrrev_b32 v1, 6, v0")
    e("v_readfirstlane_b32 s12, v1")
    e("v_and_b32 v2, 63, v0")
    e("v_lshlrev_b32 v1, 4, v2")
    e("s_and_b32 s13, s2, 7")
    e("s_lshr_b32 s14, s2, 3")
    e("s_lshr_b32 s15, s14, 4")
    e("s_lshl_b32 s13, s13, 1")
    e("s_add_u32 s13, s13, s15")
    e("s_and_b32 s14, s14, 15")
    e("s_lshl_b32 s15, s13, 2")
    e("s_add_u32 s15, s15, s12")
    e("s_lshl_b32 s15, s15, 16")
    e(f"s_add_u32 s40, s15, {KVB}")
    for i in range(1, 16):
        e(f"s_add_u32 s{40+i}, s40, {4096*i}")
    e("s_lshl_b32 s15, s13, 4")
    e("s_add_u32 s15, s15, s14")
    e("s_lshl_b32 s15, s15, 13")
    e(f"s_add_u32 s15, s15, {QB}")
    for i in range(4):
        e(f"s_add_u32 s{20+i}, s12, {i+1}")
        e(f"s_and_b32 s{20+i}, s{20+i}, 3")
        e(f"s_lshl_b32 s{24+i}, s{20+i}, 11")
        e(f"s_add_u32 s{24+i}, s{24+i}, s15")
    e.wait(lg=0)
    srd(e, 4, 56, WS_BYTES)
    qld = lambda i: [f"buffer_load_dwordx4 {v(QR[i]+4*f,4)}, v1, s[4:7], s{24+i} offen offset:{1024*f}" for f in range(2)]
    for x in qld(0) + kv_loads(0)[:2] + qld(1) + kv_loads(0)[2:] + kv_loads(1) + qld(2) + qld(3):
        e(x)
    for i in range(3):
        e(f"s_mul_i32 s28, s{20+i}, 12288")
        e(f"s_add_u32 s28, s28, {4096*i}")
        e(f"v_add_u32 v{6+i}, s28, v1")
    e("s_mul_i32 s28, s12, 12288")
    e("v_add_u32 v9, s28, v1")
    e("s_lshl_b32 s28, s14, 2")
    e("s_add_u32 s28, s28, s12")
    e(f"s_mul_i32 s30, s28, {2*BLK}")
    e(f"s_add_u32 s30, s30, {OU}")
    e("s_lshr_b32 s28, s13, 1")
    e("s_mul_i32 s28, s28, 7")
    e("s_and_b32 s29, s13, 1")
    e("s_lshl_b32 s31, s29, 2")
    e("s_add_u32 s31, s31, s28")
    e("s_add_u32 s32, s31, 2")
    e("s_add_u32 s33, s28, 3")
    e("s_lshl_b32 s29, s29, 3")
    e("v_lshrrev_b32 v4, 5, v2")
    e("v_add_u32 v12, s31, v4")
    e("v_mov_b32 v13, s32")
    e("v_mov_b32 v14, 0")
    e("s_mov_b32 exec_lo, 0")
    e("v_mov_b32 v13, s33")
    e("v_mov_b32 v14, s29")
    e("s_mov_b32 exec_lo, -1")
    e("v_bfe_u32 v4, v2, 4, 1")
    e(f"v_mul_u32_u24 v4, {BLK}, v4")
    e("v_and_b32 v15, 15, v2")
    e("v_lshl_add_u32 v4, v15, 4, v4")
    for d, u in ((10, 12), (11, 13)):
        e(f"v_lshrrev_b32 v15, 3, v{u}")
        e(f"v_mul_u32_u24 v15, {PAIR}, v15")
        e(f"v_and_b32 v{u}, 7, v{u}")
        e(f"v_lshl_add_u32 v15, v{u}, 8, v15")
        e(f"v_add_u32 v{d}, v15, v4")
    e("v_add_u32 v11, v11, v14")
    e("s_mov_b32 s34, 0")
    warm = []
    if cfg.get("warm", 0):
        nb = cfg["warm"]
        e("s_lshr_b32 s28, s2, 3")
        e("s_lshl_b32 s28, s28, 8")
        e("v_add_u32 v3, s28, v0")
        e("v_lshlrev_b32 v3, 7, v3")
        for i in range((nb + (1 << 20) - 1) >> 20):
            warm.append(i)
    e.label("La_main")
    vm_at_main = list(e.vm)
    for x in kv_loads(2) + kv_loads(3):
        e(x)
    seq = tile_seq()

    def qk(t):
        qb, kt = seq[t]
        Sx = SB[t & 1]
        return [f"v_mfma_f32_32x32x16_bf16 {v(Sx,16)}, {a(16*kt,4)}, {v(QR[qb],4)}, 0",
                f"v_mfma_f32_32x32x16_bf16 {v(Sx,16)}, {a(16*kt+4,4)}, {v(QR[qb]+4,4)}, {v(Sx,16)}"]

    def pv(t):
        qb, kt = seq[t]
        Px = PB[t & 1]
        c0 = "0" if kt == 0 else v(OA[qb], 16)
        return [f"v_mfma_f32_32x32x16_bf16 {v(OA[qb],16)}, {a(16*kt+8,4)}, {v(Px,4)}, {c0}",
                f"v_mfma_f32_32x32x16_bf16 {v(OA[qb],16)}, {a(16*kt+12,4)}, {v(Px+4,4)}, {v(OA[qb],16)}"]

    extra = {t: [[], [], [], []] for t in range(65)}
    for kt in range(4, 16):
        l = kv_loads(kt)
        t0 = 2 * (kt - 4)
        extra[t0][1].append(l[0]); extra[t0][3].append(l[1])
        extra[t0 + 1][1].append(l[2]); extra[t0 + 1][3].append(l[3])
    for i, t0 in ((0, 33), (1, 35), (2, 50)):
        for qd in range(4):
            extra[t0][qd].append((f"ds_write_b128 v{6+i}, {v(OA[i]+4*qd,4)} offset:{1024*qd}", "red"))
    def bar():
        e.wait_tag("red")
        e("s_barrier")
    extra[52][0].append(bar)
    for i in range(3):
        for qd in range(4):
            extra[53 + i][qd].append(f"ds_read_b128 {v(TB_[i]+4*qd,4)}, v9 offset:{4096*i+1024*qd}")
    for i in (1, 2):
        for k in range(8):
            extra[55 + 2 * i + k // 4][k % 4].append(f"v_pk_add_f32 {v(TB_[0]+2*k,2)}, {v(TB_[0]+2*k,2)}, {v(TB_[i]+2*k,2)}")
    for n, i in enumerate(warm):
        def w(i=i):
            e(f"s_mov_b32 s28, {i << 20}")
            e("buffer_load_dword v5, v3, s[4:7], s28 offen")
            e.vm[-1] = (set(), "pf")
        extra[26 + 2 * n][0].append(w)
    if cfg.get("warm_code"):
        lab, nb = cfg["warm_code"]
        extra[40][0].append(lambda: code_prefetch(e, lab, nb, 4, 5, 60))

    for x in qk(0):
        e(x)
    for t in range(64):
        Sx, Px = SB[t & 1], PB[t & 1]
        m = (qk(t + 1) if t < 63 else [None, None]) + (pv(t - 1) if t > 0 else [None, None])
        ex = [f"v_exp_f32 v{Sx+i}, v{Sx+i}" for i in range(16)]
        cv = [f"v_cvt_pk_bf16_f32 v{Px+i}, v{Sx+2*i}, v{Sx+2*i+1}" for i in range(8)]
        groups = [ex[0:4] + cv[0:1], ex[4:8] + cv[1:3], ex[8:12] + cv[3:5], ex[12:16] + cv[5:8]]
        for g in range(4):
            if m[g]:
                e(m[g])
            for x in extra[t][g]:
                put(e, x)
            for x in groups[g]:
                e(x)
    for x in pv(63):
        e(x)
    O = OA[3]
    for k in range(8):
        e(f"v_pk_add_f32 {v(O+2*k,2)}, {v(O+2*k,2)}, {v(TB_[0]+2*k,2)}")
    e(f"v_mov_b32 v12, v{O+12}")
    e(f"v_mov_b32 v13, v{O+12}")
    e("v_permlane32_swap_b32 v12, v13")
    e("v_rcp_f32 v14, v13")
    e(f"v_mov_b32 v15, {fl(2.0**-60)}")
    e("v_cmp_nge_f32 vcc, v13, v15")
    e(f"v_mov_b32 v15, {fl(2.0**60)}")
    e("v_cmp_nle_f32 s[36:37], v13, v15")
    for k in range(8):
        e(f"v_pk_mul_f32 {v(O+2*k,2)}, {v(O+2*k,2)}, v[14:15] op_sel_hi:[1,0]")
    e("s_or_b64 vcc, vcc, s[36:37]")
    e("s_cselect_b32 s35, 1, 0")
    for k in range(8):
        e(f"v_cvt_pk_bf16_f32 v{PB[0]+k}, v{O+2*k}, v{O+2*k+1}")
    e(f"buffer_store_dwordx4 {v(PB[0],4)}, v10, s[4:7], s30 offen")
    e("s_mov_b32 exec_hi, 0")
    e(f"buffer_store_dwordx4 {v(PB[0]+4,4)}, v11, s[4:7], s30 offen")
    e("s_mov_b32 exec_hi, -1")
    e("s_mov_b32 exec_lo, 0")
    e(f"buffer_store_dwordx2 {v(PB[0]+4,2)}, v11, s[4:7], s30 offen")
    e("s_mov_b32 exec_lo, -1")
    e("s_cmp_eq_u32 s34, 1")
    e("s_cbranch_scc1 La_end")
    e("s_lshl_b32 s28, s12, 2")
    e("v_mov_b32 v12, s28")
    e("v_mov_b32 v13, s35")
    e("ds_write_b32 v12, v13 offset:51200")
    e.wait(lg=0)
    e("s_barrier")
    e("v_mov_b32 v12, 0")
    e("ds_read_b128 v[212:215], v12 offset:51200")
    e("v_or3_b32 v12, v212, v213, v214")
    e("v_or_b32 v12, v12, v215")
    e("v_cmp_ne_u32 vcc, 0, v12")
    e("s_cbranch_vccnz La_slow")
    e.label("La_end")
    e("s_endpgm")
    e.label("La_slow")
    e.force_wait(vm=0, lg=0)
    e("s_mov_b32 exec_lo, 0")
    for i in range(4):
        e(f"v_mov_b32 v{QR[i]+6}, 0")
        e(f"v_mov_b32 v{QR[i]+7}, 0")
    e("s_mov_b32 exec_lo, -1")
    for i in range(4):
        e(f"v_mov_b32 v{MX+i}, 0xff800000")
    for x in qk(0):
        e(x)
    for t in range(64):
        if t < 63:
            for x in qk(t + 1):
                e(x)
        Sx = SB[t & 1]
        for k in range(8):
            e(f"v_max3_f32 v{MX+seq[t][0]}, v{Sx+2*k}, v{Sx+2*k+1}, v{MX+seq[t][0]}")
    e("v_and_b32 v14, 31, v2")
    e("v_lshlrev_b32 v14, 4, v14")
    for i in range(4):
        e(f"v_mov_b32 v12, v{MX+i}")
        e(f"v_permlane32_swap_b32 v12, v{MX+i}")
        e(f"v_max_f32 v12, v12, v{MX+i}")
        e(f"s_lshl_b32 s28, s{20+i}, 9")
        e("s_lshl_b32 s29, s12, 2")
        e("s_add_u32 s29, s29, s28")
        e("v_add_u32 v13, s29, v14")
        e("ds_write_b32 v13, v12 offset:49152")
    e.wait(lg=0)
    e("s_barrier")
    for i in range(4):
        e(f"s_lshl_b32 s28, s{20+i}, 9")
        e("v_add_u32 v13, s28, v14")
        e("ds_read_b128 v[212:215], v13 offset:49152")
        e("v_max3_f32 v12, v212, v213, v214")
        e("v_max_f32 v12, v12, v215")
        e("v_sub_f32 v12, 0, v12")
        e("v_and_b32 v212, 0xffff0000, v12")
        e("v_sub_f32 v12, v12, v212")
        e("v_and_b32 v213, 0xffff0000, v12")
        e("v_sub_f32 v12, v12, v213")
        e("v_lshrrev_b32 v212, 16, v212")
        e("s_mov_b32 exec_lo, 0")
        e(f"v_or_b32 v{QR[i]+6}, v212, v213")
        e(f"v_lshrrev_b32 v{QR[i]+7}, 16, v12")
        e("s_mov_b32 exec_lo, -1")
    e.force_wait(vm=0, lg=0)
    e("s_barrier")
    e("s_mov_b32 s34, 1")
    e.settle()
    e("s_branch La_main")
    e.label("La_code_end")
```

```python
from emit import *
from layout import *
from k_prep import srd, code_prefetch, fl, f2u, smod, stat_addr, stats16
import math

EPS = 1e-5
C1 = -2.0 * math.sqrt(2.0 / math.pi) * math.log2(math.e)
C2 = C1 * 0.044715
QSC = DH ** -0.5 * math.log2(math.e)
POLL_LIMIT = 200000

L_B = 0
L_A = 57344
L_Q = 65536
L_R = 151552
CHAIN_LDS = 163840

sYB, sHB, sX1B, sXN, sGB, sFL, sW3, sW4 = 40, 41, 42, 43, 44, 45, 46, 47
sROT = 48

ACC, Y, OWN, ACT, ST, RING = 16, 32, 48, 56, 112, 128
vMU, vR1, vK, vRI = 120, 121, 122, 124


class Stamp:
    def __init__(self, e, on):
        self.e, self.on, self.n = e, on, 0
    def __call__(self, name=""):
        if not self.on:
            return
        e = self.e
        e.raw(f"    s_memtime s[{70+2*self.n}:{71+2*self.n}]")
        e.slot += 1
        e.lg.append((set(), None, True))
        self.n += 1
        assert self.n <= 14
    def flush(self, base):
        if not self.on:
            return
        e = self.e
        e.force_wait(lg=0)
        e("s_lshl_b32 s28, s2, 2")
        e("s_add_u32 s28, s28, s12")
        e("s_lshl_b32 s28, s28, 6")
        e("s_lshl_b32 s29, s18, 16")
        e("s_add_u32 s28, s28, s29")
        e(f"s_add_u32 s28, s28, {STAMP+base}")
        e("v_mov_b32 v10, 0")
        for i in range(self.n):
            e(f"v_mov_b32 v11, s{70+2*i}")
            e(f"buffer_store_dword v11, v10, s[4:7], s28 offen offset:{4*i}")


_pn = [0]
def poll(e, vaddr, soff, vt):
    _pn[0] += 1
    n = _pn[0]
    e("s_mov_b32 s39, 0")
    e.label(f"Lpoll{n}")
    e(f"buffer_load_dword v{vt}, v{vaddr}, s[4:7], s{soff} offen sc1")
    e.force_wait(vm=0)
    e(f"v_cmp_ne_u32 vcc, 1, v{vt}")
    e(f"s_cbranch_vccz Lpolld{n}")
    e("s_add_u32 s39, s39, 1")
    e(f"s_cmp_lt_u32 s39, {POLL_LIMIT}")
    e(f"s_cbranch_scc1 Lpoll{n}")
    e.label(f"Lpolld{n}")


def publish(e, tag, soff, imm, SC):
    e.wait_tag(tag)
    e("s_mov_b64 exec, 1")
    e(f"buffer_store_dword v15, off, s[4:7], s{soff} offset:{imm} {SC}".rstrip())
    e("s_mov_b64 exec, -1")


def dma(e, n, ssrc, slds, tag, first=0, flags=""):
    out = []
    for i in range(first, first + n):
        def f(i=i):
            if i % 4 == 0 or i == first:
                e(f"s_add_u32 m0, s{slds}, {(i//4)*4096}")
                e(f"s_add_u32 s38, s{ssrc}, {(i//4)*4096}")
            e(f"buffer_load_dwordx4 v1, s[4:7], s38 offen offset:{(i%4)*1024} {flags} lds".replace("  ", " "), tag=tag)
        out.append(f)
    return out


def wload(e, areg, sbase, idx):
    def f():
        e(f"s_add_u32 s37, s{sbase}, {(idx//4)*4096}")
        e(f"buffer_load_dwordx4 {areg}, v1, s[4:7], s37 offen offset:{(idx%4)*1024}")
    return f


def wloads(e, regs, sbase, idxs):
    out = []
    last = [None]
    for r, idx in zip(regs, idxs):
        def f(r=r, idx=idx, new=(last[0] != idx // 4)):
            if new:
                e(f"s_add_u32 s37, s{sbase}, {(idx//4)*4096}")
            e(f"buffer_load_dwordx4 {r}, v1, s[4:7], s37 offen offset:{(idx%4)*1024}")
        last[0] = idx // 4
        out.append(f)
    return out


def s1_pre(e, vb, n=8):
    for sl in range(n):
        for t in range(4):
            e(f"ds_read_b128 {v(RING+16*sl+4*t,4)}, v{vb} offset:{(sl*4+t)*1024}")


def s1_main(e, vb, act, slots, zero_first=False, fill=()):
    fill = list(fill)
    for sl in slots:
        for t in range(4):
            c = "0" if (zero_first and sl == 0) else v(ACC + 4 * t, 4)
            e(f"v_mfma_f32_16x16x32_bf16 {v(ACC+4*t,4)}, {v(RING+16*(sl%8)+4*t,4)}, {act[sl]}, {c}")
            if sl + 8 < 14:
                e(f"ds_read_b128 {v(RING+16*(sl%8)+4*t,4)}, v{vb} offset:{((sl+8)*4+t)*1024}")
            elif fill:
                put(e, fill.pop(0))
                if fill:
                    put(e, fill.pop(0))
    for x in fill:
        put(e, x)


def rot_bases(e, sbase):
    for i in range(7):
        e(f"s_add_u32 s{sROT+i}, s{sbase}, s{20+i}")


def stats_total(st, n, t):
    o = []
    o.append(f"v_add_f32 v{t}, v{st}, v{st+1}")
    for i in range(2, n):
        o.append(f"v_add_f32 v{t}, v{t}, v{st+i}")
    o.append(f"v_mov_b32 v{t+1}, v{t}")
    o.append(f"v_permlane16_swap_b32 v{t}, v{t+1}")
    o.append(f"v_add_f32 v{t}, v{t}, v{t+1}")
    o.append(f"v_mov_b32 v{t+1}, v{t}")
    o.append(f"v_permlane32_swap_b32 v{t}, v{t+1}")
    return o


def mean_rstd(t, mu, r, var):
    return [f"v_mul_f32 v{mu}, {fl(1.0/D)}, v{t}",
            f"v_mul_f32 v{var}, {fl(1.0/D)}, v{t+1}",
            f"v_fma_f32 v{var}, -v{mu}, v{mu}, v{var}",
            f"v_max_f32 v{var}, 0, v{var}",
            f"v_add_f32 v{r}, {fl(EPS)}, v{var}",
            f"v_rsq_f32 v{r}, v{r}"]


def gelu_consts(r, k, ri):
    return [f"v_rcp_f32 v{ri}, v{r}",
            f"v_mul_f32 v{k+1}, v{r}, v{r}",
            f"v_mul_f32 v{k}, {fl(C1)}, v{r}",
            f"v_mul_f32 v{k+1}, v{k+1}, v{k}",
            f"v_mul_f32 v{k+1}, {fl(0.044715)}, v{k+1}"]


def gelu(x, n, out, k, ri, t, grp=4):
    o = []
    for g in range(0, n // 2, grp):
        P = range(g, min(g + grp, n // 2))
        T = lambda p: t + 2 * (p - g)
        X = lambda p: x + 2 * p
        o += [f"v_pk_mul_f32 {v(T(p),2)}, {v(X(p),2)}, {v(X(p),2)}" for p in P]
        o += [f"v_pk_fma_f32 {v(T(p),2)}, {v(T(p),2)}, {v(k,2)}, {v(k,2)} op_sel:[0,1,0] op_sel_hi:[1,1,0]" for p in P]
        o += [f"v_pk_mul_f32 {v(T(p),2)}, {v(T(p),2)}, {v(X(p),2)}" for p in P]
        for p in P:
            o += [f"v_exp_f32 v{T(p)}, v{T(p)}", f"v_exp_f32 v{T(p)+1}, v{T(p)+1}"]
        o += [f"v_pk_fma_f32 {v(T(p),2)}, {v(T(p),2)}, {v(ri,2)}, {v(ri,2)} op_sel_hi:[1,0,0]" for p in P]
        for p in P:
            o += [f"v_rcp_f32 v{T(p)}, v{T(p)}", f"v_rcp_f32 v{T(p)+1}, v{T(p)+1}"]
        o += [f"v_pk_mul_f32 {v(T(p),2)}, {v(T(p),2)}, {v(X(p),2)}" for p in P]
        o += [f"v_cvt_pk_bf16_f32 v{out+p}, v{T(p)}, v{T(p)+1}" for p in P]
    return o


def ids(e):
    e("v_lshrrev_b32 v1, 6, v0")
    e("v_readfirstlane_b32 s12, v1")
    e("v_and_b32 v0, 63, v0")
    e("v_lshlrev_b32 v1, 4, v0")
    e("s_and_b32 s13, s2, 7")
    e("s_lshr_b32 s14, s2, 3")


def qkv_wdma(e):
    e("s_and_b32 s28, s14, 15")
    e("s_mul_i32 s28, s28, 84")
    e("s_mul_i32 s29, s12, 21")
    e("s_add_u32 s28, s28, s29")
    e("s_lshl_b32 s28, s28, 10")
    e(f"s_add_u32 s35, s28, {WQ_F}")
    e("s_lshl_b32 s29, s29, 10")
    e(f"s_add_u32 s36, s29, {L_Q}")
    return dma(e, 21, 35, 36, "wq")


def gen_chain(e, cfg):
    SC = cfg.get("sc", "sc1")
    LD = "sc1"
    st = Stamp(e, cfg.get("stamp"))
    e.reset()
    e.label("qkv_kernel")
    e("s_cmp_ge_u32 s2, 256")
    e("s_cbranch_scc1 Lc_end")
    e("s_load_dwordx2 s[56:57], s[0:1], 80")
    code_prefetch(e, "Lc_qkv", cfg.get("qkv_bytes", 4096), 4, 255, 60)
    ids(e)
    e.wait(lg=0)
    srd(e, 4, 56, WS_BYTES)
    e("s_mov_b32 s18, 2")
    for x in qkv_wdma(e):
        x()
    e(f"s_mov_b32 s{sXN}, {XU[0]}")
    e("s_branch Lc_qkv_go")
    e.raw(".p2align 8")
    e.reset()
    e.label("chain1_kernel")
    e("s_mov_b32 s18, 1")
    e("s_branch Lc_body")
    e.raw(".p2align 8")
    e.label("chain0_kernel")
    e("s_mov_b32 s18, 0")
    e.label("Lc_body")
    e("s_cmp_ge_u32 s2, 256")
    e("s_cbranch_scc1 Lc_end")
    st("start")
    e("s_load_dwordx2 s[56:57], s[0:1], 80")
    e("s_load_dwordx2 s[58:59], s[0:1], 64")
    code_prefetch(e, "Lc_body", cfg.get("chain_bytes", 20480), 4, 255, 60)
    ids(e)
    e("s_and_b32 s15, s14, 7")
    e("s_lshr_b32 s16, s14, 3")
    e("s_lshl_b32 s28, s13, 2")
    e("s_add_u32 s16, s16, s28")
    e("s_lshl_b32 s17, s16, 2")
    e("s_add_u32 s17, s17, s12")
    e(f"s_mul_i32 s28, s18, {FSZ}")
    e(f"s_add_u32 s{sFL}, s28, {FLG}")
    e(f"s_mov_b32 s{sXN}, {XU[1]}")
    e("v_mov_b32 v15, 1")
    e.wait(lg=0)
    srd(e, 4, 56, WS_BYTES)
    srd(e, 8, 58, S * D * 2)
    e("s_cmp_eq_u32 s15, 7")
    e("s_cbranch_scc1 Lc_spare")
    e(f"s_mul_i32 s28, s15, {SLICE}")
    e("s_mul_i32 s29, s12, 14336")
    e("s_add_u32 s28, s28, s29")
    e(f"s_add_u32 s30, s28, {WO_F}")
    e(f"s_add_u32 s31, s28, {W1_F}")
    e(f"s_add_u32 s32, s28, {W2_F}")
    e(f"s_add_u32 s33, s29, {L_A}")
    e(f"s_add_u32 s34, s29, {L_B}")
    for x in dma(e, 14, 30, 33, "wo"):
        x()
    for i in range(7):
        e(f"s_add_u32 s{20+i}, s15, {i}")
        smod(e, 20 + i, 7)
        e(f"s_mul_i32 s{20+i}, s{20+i}, {PAIR}")
    e(f"s_mul_i32 s28, s17, {BLK}")
    e(f"s_add_u32 s29, s28, {OU}")
    rot_bases(e, 29)
    act = [v(ACT + 4 * i, 4) for i in range(14)]
    e(f"s_mul_i32 s29, s18, {XU[1]-XU[0]}")
    e("s_add_u32 s29, s29, s28")
    e("s_add_u32 s29, s29, s20")
    e(f"s_add_u32 s29, s29, {XU[0]}")
    for f in range(2):
        e(f"buffer_load_dwordx4 {v(OWN+4*f,4)}, v1, s[4:7], s29 offen offset:{1024*f}")
    for i in range(14):
        e(f"buffer_load_dwordx4 {act[i]}, v1, s[4:7], s{sROT+i//2} offen offset:{1024*(i%2)}")
    for x in dma(e, 14, 31, 34, "w1"):
        x()
    e(f"s_mul_i32 s29, s18, {LSZ}")
    e(f"s_add_u32 s29, s29, {L0}")
    e(f"s_add_u32 s{sYB}, s29, s28")
    e(f"s_add_u32 s{sX1B}, s{sYB}, {X1U_O}")
    e(f"s_mul_i32 s35, s13, {2*BLK}")
    e(f"s_add_u32 s{sHB}, s{sYB}, s35")
    e(f"s_add_u32 s{sHB}, s{sHB}, {HU_O}")
    e(f"s_mul_i32 s35, s16, {224*1024}")
    e("s_lshl_b32 s36, s12, 13")
    e("s_add_u32 s35, s35, s36")
    e("s_add_u32 s35, s35, s29")
    e(f"s_add_u32 s{sGB}, s35, {G_O}")
    e("s_lshl_b32 s35, s15, 2")
    e("s_add_u32 s35, s35, s12")
    e(f"s_mul_i32 s35, s35, {SLICE}")
    e(f"s_add_u32 s{sW3}, s35, {W3_F}")
    e(f"s_add_u32 s{sW4}, s35, {W4_F}")
    e("s_lshl_b32 s62, s17, 6")
    e(f"s_add_u32 s62, s62, s{sFL}")
    e("s_lshl_b32 s35, s15, 2")
    e("s_add_u32 s63, s62, s35")
    e("s_lshl_b32 s64, s17, 7")
    e(f"s_add_u32 s64, s64, s{sFL}")
    e(f"s_add_u32 s64, s64, {FG_O}")
    e("s_add_u32 s65, s64, s35")
    stat_addr(e, 2, 0, 10)
    e("v_min_u32 v3, 6, v0")
    e("v_lshlrev_b32 v3, 2, v3")
    e(f"v_add_u32 v13, {L_A}, v1")
    e("v_and_b32 v10, 15, v0")
    e("v_lshrrev_b32 v11, 4, v0")
    for g, dl in enumerate((1, -1, 2, -2)):
        e(f"v_add_u32 v12, {16-dl}, v10")
        e(f"v_lshrrev_b32 v{4+g}, 4, v12")
        e(f"v_mul_u32_u24 v{4+g}, {BLK}, v{4+g}")
        e("v_and_b32 v12, 15, v12")
        e(f"v_lshl_add_u32 v{4+g}, v12, 4, v{4+g}")
        e(f"v_lshl_add_u32 v{4+g}, v11, 8, v{4+g}")
    e("v_mov_b32 v8, v4")
    e("v_mov_b32 v9, v6")
    e("s_mov_b32 exec_lo, 0")
    e("v_mov_b32 v8, v5")
    e("v_mov_b32 v9, v7")
    e("s_mov_b32 exec_lo, -1")
    e("s_and_b32 s35, s17, 15")
    e("v_bfe_u32 v10, v0, 3, 2")
    e("v_min_u32 v10, 2, v10")
    e("v_add_u32 v10, s35, v10")
    e("v_med3_u32 v10, v10, 1, 16")
    e("v_subrev_u32 v10, s35, v10")
    e("v_and_b32 v11, 7, v0")
    e("v_min_u32 v11, 6, v11")
    e("v_lshlrev_b32 v11, 2, v11")
    e("v_lshl_add_u32 v14, v10, 6, v11")
    for i in range(8):
        e(f"v_lshlrev_b32 v{ACC+2*i}, 16, v{OWN+i}")
        e(f"v_and_b32 v{ACC+2*i+1}, 0xffff0000, v{OWN+i}")
    e.wait_tag("wo")
    e("s_barrier")
    st("wo ready")
    s1_pre(e, 13)
    s1_main(e, 13, act, range(14))
    e(f"s_add_u32 s29, s{sYB}, s20")
    for i in range(8):
        e(f"v_cvt_pk_bf16_f32 v{OWN+i}, v{ACC+2*i}, v{ACC+2*i+1}")
        if i % 4 == 3:
            e(f"buffer_store_dwordx4 {v(OWN+i-3,4)}, v1, s[4:7], s29 offen offset:{1024*(i//4)} {SC}".rstrip(), tag="y")
    for x in stats16(ACC, ST):
        e(x)
    e(f"buffer_store_dword v{ST}, v2, s[4:7], s29 offen offset:2048 {SC}".rstrip(), tag="y")
    for i in range(8):
        e(f"v_pk_mul_f32 {v(Y+2*i,2)}, {v(ACC+2*i,2)}, 1.0 op_sel_hi:[1,0]")
    st("wo done")
    publish(e, "y", 63, FY_O, SC)
    e("s_barrier")
    w3regs = [a(4 * i, 4) for i in range(56)]
    w3l = wloads(e, w3regs, sW3, list(range(56)))
    for x in dma(e, 14, 32, 33, "w2"):
        x()
    s1_pre(e, 1)
    act1 = [v(OWN, 4), v(OWN + 4, 4)] + act[2:]
    s1_main(e, 1, act1, range(2), zero_first=True)
    rot_bases(e, sYB)
    poll(e, 3, 62, 10)
    st("y flags")
    for i in range(2, 14):
        e(f"buffer_load_dwordx4 {act[i]}, v1, s[4:7], s{sROT+i//2} offen offset:{1024*(i%2)} {LD}")
        if i == 5:
            for k in range(1, 7):
                e(f"buffer_load_dword v{ST+k}, v2, s[4:7], s{sROT+k} offen offset:2048 {LD}")
    for x in w3l[:16]:
        x()
    fill = stats_total(ST, 7, 126) + mean_rstd(126, vMU, vR1, 127)
    fill += ["v_mul_f32 v126, v121, v121", f"v_mov_b32 v125, {fl(EPS)}", "v_fma_f32 v126, v126, v127, v125",
             "v_rsq_f32 v126, v126", "v_mul_f32 v126, v126, v121"] + gelu_consts(126, vK, vRI)
    s1_main(e, 1, act1, range(2, 14), fill=fill)
    e(f"s_add_u32 s29, s{sHB}, s20")
    e(f"s_add_u32 s29, s29, {BLK}")
    g = gelu(ACC, 16, OWN, vK, vRI, RING)
    for x in g[:len(g) // 2]:
        e(x)
    e(f"buffer_store_dwordx4 {v(OWN,4)}, v1, s[4:7], s29 offen {SC}".rstrip(), tag="h")
    for x in g[len(g) // 2:]:
        e(x)
    e(f"buffer_store_dwordx4 {v(OWN+4,4)}, v1, s[4:7], s29 offen offset:1024 {SC}".rstrip(), tag="h")
    e("s_and_b32 s35, s17, 15")
    e("s_add_u32 s36, s17, 1")
    e("s_and_b32 s28, s36, 14")
    e("s_cmp_lg_u32 s28, 0")
    e("s_cbranch_scc1 Lc_nohalo")
    e("s_and_b32 s28, s36, 126")
    e("s_cmp_eq_u32 s28, 0")
    e("s_cbranch_scc1 Lc_nohalo")
    e("s_cmp_eq_u32 s35, 0")
    e(f"s_cselect_b32 s28, {-2*BLK & 0xffffffff}, s0")
    e(f"s_cselect_b32 s28, s28, {2*BLK}")
    e("s_cselect_b32 exec_lo, 0x00030003, s0")
    e("s_cselect_b32 exec_lo, exec_lo, 0xc000c000")
    e("s_mov_b32 exec_hi, exec_lo")
    e("s_add_u32 s28, s28, s29")
    e(f"buffer_store_dwordx4 {v(OWN,4)}, v1, s[4:7], s28 offen sc1")
    e(f"buffer_store_dwordx4 {v(OWN+4,4)}, v1, s[4:7], s28 offen offset:1024 sc1")
    e("s_mov_b64 exec, -1")
    e.vm = e.vm[:-2]
    e.label("Lc_nohalo")
    e(f"v_mul_f32 v126, v{vMU}, v{vR1}")
    e(f"v_sub_f32 v{vMU}, 0, v126")
    for i in range(8):
        e(f"v_pk_fma_f32 {v(ACC+2*i,2)}, {v(Y+2*i,2)}, {v(vMU,2)}, {v(vMU,2)} op_sel:[0,1,0] op_sel_hi:[1,1,0]")
    st("w1 done")
    e.force_wait(vm=0)
    e(f"s_add_u32 s35, s63, {FH_O}")
    publish(e, "h", 35, 0, SC)
    e("s_barrier")
    for x in w3l[16:24]:
        x()
    s1_pre(e, 13)
    e(f"s_add_u32 s35, s62, {FH_O-64}")
    poll(e, 14, 35, 10)
    e("s_add_u32 s36, s17, 1")
    e("s_and_b32 s28, s36, 14")
    e("s_cmp_lg_u32 s28, 0")
    e("s_cbranch_scc1 Lc_nohalo2")
    e("s_and_b32 s35, s17, 15")
    e("s_cmp_eq_u32 s35, 0")
    e("s_cselect_b32 s28, 0, 14")
    e(f"s_cselect_b32 s35, {14*16}, s0")
    e(f"s_cselect_b32 s35, s35, {2*BLK}")
    e(f"s_add_u32 s35, s35, s{sHB}")
    e("v_min_u32 v10, 55, v0")
    e("v_lshrrev_b32 v11, 1, v10")
    e("v_cmp_le_u32 vcc, 14, v11")
    e("v_cndmask_b32 v12, 0, 14, vcc")
    e("v_add3_u32 v11, v11, v12, s28")
    e("v_lshrrev_b32 v12, 3, v11")
    e(f"v_mul_u32_u24 v12, {PAIR}, v12")
    e("v_and_b32 v11, 7, v11")
    e("v_lshl_add_u32 v12, v11, 8, v12")
    e("v_and_b32 v10, 1, v10")
    e("v_lshl_add_u32 v12, v10, 4, v12")
    e("s_mov_b32 s39, 0")
    e.label("Lc_hpoll")
    e(f"buffer_load_dwordx4 {v(ACT,4)}, v12, s[4:7], s35 offen sc1")
    e.force_wait(vm=0)
    e(f"v_max3_u32 v10, v{ACT}, v{ACT+1}, v{ACT+2}")
    e(f"v_max_u32 v10, v10, v{ACT+3}")
    e("v_cmp_eq_u32 vcc, -1, v10")
    e("s_cbranch_vccz Lc_nohalo2")
    e("s_add_u32 s39, s39, 1")
    e(f"s_cmp_lt_u32 s39, {POLL_LIMIT}")
    e("s_cbranch_scc1 Lc_hpoll")
    e.label("Lc_nohalo2")
    st("h flags")
    hv = [4, 4, 4, 8, 5, 5, 5, 6, 6, 6, 9, 7, 7, 7]
    for i in range(14):
        if i % 2 == 0:
            e(f"s_add_u32 s35, s{sHB}, {(i//2)*PAIR}")
        e(f"buffer_load_dwordx4 {act[i]}, v{hv[i]}, s[4:7], s35 offen offset:{1024*(i%2)} {LD}")
    for x in w3l[24:40]:
        x()
    s1_main(e, 13, act, range(14))
    e(f"s_add_u32 s29, s{sX1B}, s20")
    e("v_add_u32 v12, s34, v1")
    for i in range(8):
        e(f"v_cvt_pk_bf16_f32 v{OWN+i}, v{ACC+2*i}, v{ACC+2*i+1}")
        if i % 4 == 3:
            e(f"buffer_store_dwordx4 {v(OWN+i-3,4)}, v1, s[4:7], s29 offen offset:{1024*(i//4)} {SC}".rstrip(), tag="x1")
    for x in stats16(ACC, ST):
        e(x)
    e(f"buffer_store_dword v{ST}, v2, s[4:7], s29 offen offset:2048 {SC}".rstrip(), tag="x1")
    e(f"ds_write_b128 v12, {v(OWN,4)}")
    e(f"ds_write_b128 v12, {v(OWN+4,4)} offset:1024")
    for i in range(8):
        e(f"v_pk_add_f32 {v(Y+2*i,2)}, {v(Y+2*i,2)}, {v(ACC+2*i,2)}")
    st("w2 done")
    e(f"s_add_u32 s35, s63, {FX1_O}")
    publish(e, "x1", 35, 0, SC)
    for x in w3l[40:56]:
        x()
    e.wait(lg=0)
    e("s_barrier")
    GO, A3, AR, GT, A4 = 48, 80, 144, 176, 192
    KC = [16, 20]
    e(f"v_mov_b32 v24, v{ST}")
    e("v_bfe_u32 v10, v0, 4, 1")
    e("v_mul_u32_u24 v10, 14336, v10")
    e("v_lshrrev_b32 v11, 5, v0")
    e("v_lshl_add_u32 v10, v11, 8, v10")
    e("v_and_b32 v11, 15, v0")
    e("v_lshl_add_u32 v4, v11, 4, v10")
    acc3 = lambda ft, th: A3 + 32 * ft + 16 * th
    w3 = lambda ft, s_: a(4 * (28 * ft + s_), 4)
    xrd = lambda r, th, s_: f"ds_read_b128 {v(AR+4*r,4)}, v4 offset:{th*28672+s_*512}"
    for s_ in range(4):
        for th in range(2):
            e(xrd(2 * s_ + th, th, s_))
    for s_ in range(4):
        for th in range(2):
            for ft in range(2):
                c = "0" if s_ == 0 else v(acc3(ft, th), 16)
                e(f"v_mfma_f32_32x32x16_bf16 {v(acc3(ft,th),16)}, {w3(ft,s_)}, {v(AR+4*(2*s_+th),4)}, {c}")
    slots = list(range(56, 64)) + [0, 1, 2, 3, 28, 29, 30, 31] + list(range(4, 28)) + list(range(32, 48))
    w4reg = [a(4 * x, 4) for x in slots]
    w4l = [wload(e, w4reg[i], sW4, i) for i in range(56)]
    rot_bases(e, sX1B)
    e(f"s_add_u32 s35, s62, {FX1_O}")
    poll(e, 3, 35, 10)
    st("x1 flags")
    for i in range(1, 7):
        e(f"s_add_u32 m0, s34, {2048*i}")
        e(f"buffer_load_dword v{24+i}, v2, s[4:7], s{sROT+i} offen offset:2048 {LD}")
        e(f"buffer_load_dwordx4 v1, s[4:7], s{sROT+i} offen {LD} lds", tag="x1d")
        e(f"buffer_load_dwordx4 v1, s[4:7], s{sROT+i} offen offset:1024 {LD} lds", tag="x1d")
    for x in w4l[:16]:
        x()
    for x in stats_total(24, 7, 10) + mean_rstd(10, 12, 11, 10):
        e(x)
    e("v_and_b32 v10, 15, v0")
    e("s_lshl_b32 s35, s12, 6")
    e(f"s_add_u32 s35, s35, {L_R}")
    e("v_lshl_add_u32 v10, v10, 2, s35")
    e("ds_write_b32 v10, v11")
    e("v_and_b32 v10, 31, v0")
    e(f"s_mov_b32 s35, {L_R}")
    e("v_lshl_add_u32 v10, v10, 2, s35")
    e.wait_tag("x1d")
    e.wait(lg=0)
    e("s_barrier")
    st("x1 landed")
    e("ds_read_b32 v24, v10")
    e("ds_read_b32 v25, v10 offset:128")
    def gbases():
        for i in range(7):
            e(f"s_add_u32 s{sROT+i}, s15, {i}")
            smod(e, sROT + i, 7)
            e(f"s_lshl_b32 s{sROT+i}, s{sROT+i}, 15")
            e(f"s_add_u32 s{sROT+i}, s{sROT+i}, s{sGB}")
    tiles = [(0, 0), (0, 1), (1, 0), (1, 1)]
    steps = [(n, ft, th, s_) for n, (ft, th) in enumerate(tiles) for s_ in range(4, 28)]
    PRE = 6
    for k in range(PRE):
        e(xrd(k % 8, steps[k][2], steps[k][3]))
    gout = lambda ft, th: GO + 16 * ft + 8 * th
    def gstore(ft, th, s2):
        def f():
            if ft == 1 and th == 0 and s2 == 0:
                e(f"s_add_u32 s29, s{sROT}, 4096")
            so = sROT if ft == 0 else 29
            e(f"buffer_store_dwordx4 {v(gout(ft,th)+4*s2,4)}, v1, s[4:7], s{so} offen offset:{2048*th+1024*s2} {SC}".rstrip(), tag=f"g{ft}")
        return f
    def gelu_tile(ft, th):
        g = gelu(acc3(ft, th), 16, gout(ft, th), KC[th], KC[th] + 2, GT)
        h = len(g) // 2
        return g[:h] + [gstore(ft, th, 0)] + g[h:] + [gstore(ft, th, 1)]
    for n, (ft, th) in enumerate(tiles):
        main = []
        for s_ in range(4, 28):
            k = n * 24 + s_ - 4
            grp = [f"v_mfma_f32_32x32x16_bf16 {v(acc3(ft,th),16)}, {w3(ft,s_)}, {v(AR+4*(k%8),4)}, {v(acc3(ft,th),16)}"]
            if k + PRE < len(steps):
                grp.append(xrd((k + PRE) % 8, steps[k + PRE][2], steps[k + PRE][3]))
            if n == 1:
                grp.append(w4l[16 + s_ - 4])
            if n == 3 and s_ - 4 < 16:
                grp.append(w4l[40 + s_ - 4])
            main.append(grp)
        if n == 0:
            fill = [gbases] + gelu_consts(24, KC[0], KC[0] + 2) + gelu_consts(25, KC[1], KC[1] + 2)
        else:
            fill = ["s_nop 0"] * 0 + gelu_tile(*tiles[n - 1])
            for x in main[0] + main[1]:
                put(e, x)
            main = main[2:]
        if n == 3:
            publish(e, "g0", 65, 0, SC)
        left = weave(e, main, fill, 22)
        for x in left:
            put(e, x)
    st("w3 mfma done")
    acc4 = lambda ot, th: A4 + 32 * th + 16 * ot
    ring = [A3 + 4 * i for i in range(12)] + [AR + 4 * i for i in range(8)]
    def w4_mfmas(ft, i, gr, first=False):
        out = []
        for s2 in range(2):
            for th in range(2):
                for ot in range(2):
                    c = "0" if (first and s2 == 0) else v(acc4(ot, th), 16)
                    out.append([f"v_mfma_f32_32x32x16_bf16 {v(acc4(ot,th),16)}, {w4reg[((ft*7+i)*2+s2)*2+ot]}, {gr(th,s2)}, {c}"])
        return out
    chunks = [(ft, i) for ft in range(2) for i in range(1, 7)]
    greg = lambda n, th, s2: v(ring[(4 * n + 2 * s2 + th) % 20], 4)
    def gload(n):
        ft, i = chunks[n]
        out = []
        for s2 in range(2):
            for th in range(2):
                out.append(f"buffer_load_dwordx4 {greg(n,th,s2)}, v1, s[4:7], s{sROT+i} offen offset:{2048*th+1024*s2} {LD}")
        return out
    poll(e, 3, 64, 10)
    for n in range(5):
        for x in gload(n):
            e(x)
    own = lambda ft: (lambda th, s2: v(gout(ft, th) + 4 * s2, 4))
    left = weave(e, w4_mfmas(0, 0, own(0), first=True), gelu_tile(1, 1), 40)
    for x in left:
        put(e, x)
    e("s_barrier")
    for n in range(6):
        m = w4_mfmas(0, chunks[n][1], lambda th, s2: greg(n, th, s2))
        for grp in m:
            put(e, grp[0])
        if n == 0:
            publish(e, "g1", 65, 64, SC)
            for x in gload(5):
                e(x)
            for i in range(1, 7):
                e(f"s_add_u32 s{sROT+i}, s{sROT+i}, 4096")
        if n == 2:
            e("s_add_u32 s35, s64, 64")
            poll(e, 3, 35, 10)
            for x in gload(6) + gload(7):
                e(x)
        if n > 2:
            for x in gload(n + 5):
                e(x)
    for grp in w4_mfmas(1, 0, own(1)):
        put(e, grp[0])
    for n in range(6, 12):
        m = w4_mfmas(1, chunks[n][1], lambda th, s2: greg(n, th, s2))
        for grp in m:
            put(e, grp[0])
        if n == 6:
            for x in gload(11):
                e(x)
        if n == 8:
            e.wait(vm=0)
            e("s_cmp_eq_u32 s18, 1")
            e("s_cbranch_scc1 Lc_nowq")
            for x in qkv_wdma(e):
                x()
            e.vm = []
            e.label("Lc_nowq")
    st("w4 mfma done")
    e("s_lshl_b32 s35, s12, 14")
    e("v_add_u32 v10, s35, v1")
    for th in range(2):
        for ot in range(2):
            for i in range(4):
                e(f"ds_write_b128 v10, {v(acc4(ot,th)+4*i,4)} offset:{((th*2+ot)*4+i)*1024}")
    e("s_lshr_b32 s35, s12, 1")
    e("s_lshl_b32 s35, s35, 13")
    e("s_and_b32 s36, s12, 1")
    e("s_lshl_b32 s36, s36, 8")
    e("s_add_u32 s35, s35, s36")
    e("v_lshrrev_b32 v11, 4, v0")
    e("v_lshlrev_b32 v11, 10, v11")
    e("v_and_b32 v12, 15, v0")
    e("v_lshl_add_u32 v11, v12, 4, v11")
    e("v_add_u32 v11, s35, v11")
    e.wait(lg=0)
    e("s_barrier")
    RD = 80
    for src in range(4):
        for p in range(2):
            for a_ in range(2):
                e(f"ds_read_b128 {v(RD+16*src+8*p+4*a_,4)}, v11 offset:{src*16384+p*4096+a_*512}")
    for src in range(4):
        for i in range(8):
            e(f"v_pk_add_f32 {v(Y+2*i,2)}, {v(Y+2*i,2)}, {v(RD+16*src+2*i,2)}")
    for i in range(8):
        e(f"v_cvt_pk_bf16_f32 v{OWN+i}, v{Y+2*i}, v{Y+2*i+1}")
    e("s_cmp_eq_u32 s18, 0")
    e("s_cbranch_scc1 Lc_next")
    e("v_and_b32 v12, 15, v0")
    e("v_mul_u32_u24 v12, 896, v12")
    e("v_lshrrev_b32 v11, 4, v0")
    e("v_lshl_add_u32 v12, v11, 4, v12")
    e(f"s_mul_i32 s28, s17, {16*896}")
    e("s_lshl_b32 s29, s15, 7")
    e("s_add_u32 s28, s28, s29")
    e(f"buffer_store_dwordx4 {v(OWN,4)}, v12, s[8:11], s28 offen")
    e(f"buffer_store_dwordx4 {v(OWN+4,4)}, v12, s[8:11], s28 offen offset:64")
    n_st = st.n
    st("end")
    st.flush(0)
    e("s_endpgm")
    st.n = n_st
    e.vm = []
    e.label("Lc_next")
    e(f"s_mul_i32 s28, s17, {BLK}")
    e("s_add_u32 s28, s28, s20")
    e(f"s_add_u32 s29, s28, s{sXN}")
    for f in range(2):
        e(f"buffer_store_dwordx4 {v(OWN+4*f,4)}, v1, s[4:7], s29 offen offset:{1024*f} {SC}".rstrip(), tag="x")
    for x in stats16(Y, ST):
        e(x)
    e(f"buffer_store_dword v{ST}, v2, s[4:7], s29 offen offset:2048 {SC}".rstrip(), tag="x")
    e(f"s_add_u32 s35, s63, {FX_O}")
    publish(e, "x", 35, 0, SC)
    e("s_branch Lc_qkv")
    e.reset()
    e.label("Lc_spare")
    e("s_cmp_eq_u32 s18, 1")
    e("s_cbranch_scc1 Lc_end")
    for x in qkv_wdma(e):
        x()
    e.reset()
    e.label("Lc_qkv")
    e("s_lshr_b32 s28, s14, 4")
    e("s_lshl_b32 s29, s13, 1")
    e("s_add_u32 s28, s28, s29")
    e("s_lshl_b32 s28, s28, 2")
    e("s_add_u32 s28, s28, s12")
    e("s_lshl_b32 s35, s28, 7")
    e(f"s_add_u32 s35, s35, s{sFL}")
    e(f"s_add_u32 s35, s35, {FX_O}")
    e("v_and_b32 v11, 7, v0")
    e("v_min_u32 v11, 6, v11")
    e("v_lshlrev_b32 v11, 2, v11")
    e("v_bfe_u32 v10, v0, 3, 1")
    e("v_lshl_add_u32 v11, v10, 6, v11")
    poll(e, 11, 35, 10)
    e.label("Lc_qkv_go")
    e.vm = [(set(), "wq")]
    st("x flags")
    e("s_lshr_b32 s28, s14, 4")
    e("s_lshl_b32 s29, s13, 1")
    e("s_add_u32 s28, s28, s29")
    e("s_lshl_b32 s28, s28, 2")
    e("s_add_u32 s16, s28, s12")
    e(f"s_mul_i32 s28, s16, {2*BLK}")
    e(f"s_add_u32 s28, s28, s{sXN}")
    e("v_bfe_u32 v10, v0, 4, 1")
    e(f"v_mul_u32_u24 v10, {BLK}, v10")
    e("v_lshrrev_b32 v11, 5, v0")
    e("v_and_b32 v12, 15, v0")
    e("v_lshl_add_u32 v4, v11, 8, v10")
    e("v_lshl_add_u32 v4, v12, 4, v4")
    e("v_lshl_add_u32 v5, v11, 7, v10")
    e("v_lshl_add_u32 v5, v12, 3, v5")
    QS, AQ, WR = 16, 32, 128
    for c in range(7):
        for k in range(4):
            e(f"buffer_load_dwordx4 {a(4*(4*c+k),4)}, v4, s[4:7], s28 offen offset:{512*k} {LD}")
        e(f"buffer_load_dwordx2 {v(QS+2*c,2)}, v5, s[4:7], s28 offen offset:2048 {LD}")
        if c < 6:
            e(f"s_add_u32 s28, s28, {PAIR}")
    e(f"v_add_u32 v6, {L_Q}, v1")
    e(f"v_add_u32 v7, {L_Q+43008}, v1")
    e("s_and_b32 s29, s14, 15")
    e("s_lshl_b32 s29, s29, 6")
    e("s_add_u32 s29, s29, s16")
    e("s_lshl_b32 s30, s29, 11")
    e(f"s_add_u32 s30, s30, {QB}")
    e("s_lshl_b32 s31, s29, 12")
    e(f"s_add_u32 s31, s31, {KVB}")
    e("s_lshl_b32 s35, s12, 7")
    e(f"s_add_u32 s35, s35, {L_R+256}")
    e("v_and_b32 v8, 31, v0")
    e("v_lshl_add_u32 v8, v8, 2, s35")
    e("v_lshl_add_u32 v9, v11, 4, s35")
    e.wait_tag("wq")
    e("s_barrier")
    NR = 24
    wrd = lambda k: f"ds_read_b128 {v(WR+4*(k%NR),4)}, v{6 if k < 42 else 7} offset:{(k%42)*1024}"
    PRE = 12
    for k in range(PRE):
        e(wrd(k))
    main = []
    for k in range(84):
        ks, ty = divmod(k, 3)
        c = "0" if ks == 0 else v(AQ + 16 * ty, 16)
        A_, B_ = v(WR + 4 * (k % NR), 4), a(4 * ks, 4)
        if ty == 2:
            A_, B_ = B_, A_
        grp = [f"v_mfma_f32_32x32x16_bf16 {v(AQ+16*ty,16)}, {A_}, {B_}, {c}"]
        if k + PRE < 84:
            grp.append(wrd(k + PRE))
        main.append(grp)
    RV = 96
    fill = [f"v_pk_add_f32 {v(QS,2)}, {v(QS,2)}, {v(QS+2*c,2)}" for c in range(1, 7)]
    fill += [f"v_add_f32 v10, v{QS}, v{QS+1}", "v_mov_b32 v11, v10", "v_permlane32_swap_b32 v10, v11"]
    fill += mean_rstd(10, 12, 14, 10)
    fill += ["ds_write_b32 v8, v14", f"v_mul_f32 v12, {fl(QSC)}, v14"]
    fill += [f"ds_read_b128 {v(RV+4*i,4)}, v9 offset:{32*i}" for i in range(4)]
    weave(e, main[:76], [], 0)
    left = weave(e, main[76:], fill, 20)
    for x in left:
        put(e, x)
    st("qkv mfma done")
    Qa, Ka, Va, PK = AQ, AQ + 16, AQ + 32, 112
    for i in range(8):
        e(f"v_pk_mul_f32 {v(Qa+2*i,2)}, {v(Qa+2*i,2)}, v[12:13] op_sel_hi:[1,0]")
    for i in range(8):
        e(f"v_pk_mul_f32 {v(Ka+2*i,2)}, {v(Ka+2*i,2)}, v[14:15] op_sel_hi:[1,0]")
    e(f"v_pk_mul_f32 v[10:11], {v(Qa,2)}, {v(Ka,2)}")
    e(f"v_pk_mul_f32 v[12:13], {v(Qa+2,2)}, {v(Ka+2,2)}")
    for i in range(2, 8, 2):
        e(f"v_pk_fma_f32 v[10:11], {v(Qa+2*i,2)}, {v(Ka+2*i,2)}, v[10:11]")
        e(f"v_pk_fma_f32 v[12:13], {v(Qa+2*i+2,2)}, {v(Ka+2*i+2,2)}, v[12:13]")
    e("v_pk_add_f32 v[10:11], v[10:11], v[12:13]")
    e("v_add_f32 v10, v10, v11")
    e("v_mov_b32 v11, v10")
    for i in range(8):
        e(f"v_pk_mul_f32 {v(Va+2*i,2)}, {v(Va+2*i,2)}, {v(RV+2*i,2)}")
    e("v_permlane32_swap_b32 v10, v11")
    e("s_mov_b32 exec_lo, 0")
    e(f"v_sub_f32 v{Qa+12}, -v10, v11")
    for i in range(3):
        e(f"v_mov_b32 v{Ka+12+i}, 1.0")
    e("s_mov_b32 exec_lo, -1")
    for i in range(8):
        e(f"v_cvt_pk_bf16_f32 v{PK+i}, v{Ka+2*i}, v{Ka+2*i+1}")
    for f in range(2):
        e(f"buffer_store_dwordx4 {v(PK+4*f,4)}, v1, s[4:7], s31 offen offset:{1024*f}")
    for i in range(8):
        e(f"v_cvt_pk_bf16_f32 v{PK+8+i}, v{Va+2*i}, v{Va+2*i+1}")
    e("s_mov_b32 exec_lo, 0x10000000")
    e("s_mov_b32 exec_hi, 0x10000000")
    for i in range(8):
        e(f"v_mov_b32 v{PK+8+i}, 0x3f803f80")
    e("s_mov_b64 exec, -1")
    for f in range(2):
        e(f"buffer_store_dwordx4 {v(PK+8+4*f,4)}, v1, s[4:7], s31 offen offset:{2048+1024*f}")
    for i in range(8):
        e(f"v_cvt_pk_bf16_f32 v{QS+i}, v{Qa+2*i}, v{Qa+2*i+1}")
    for f in range(2):
        e(f"buffer_store_dwordx4 {v(QS+4*f,4)}, v1, s[4:7], s30 offen offset:{1024*f}")
    st("end")
    st.flush(0)
    e.label("Lc_end")
    e("s_endpgm")
    e.label("Lc_code_end")
```

```python
from emit import *
from layout import *


def srd(e, d, lo, size):
    e(f"s_mov_b32 s{d}, s{lo}")
    e(f"s_mov_b32 s{d+1}, s{lo+1}")
    e(f"s_mov_b32 s{d+2}, {size}")
    e(f"s_mov_b32 s{d+3}, 0x00020000")


def code_prefetch(e, label, nbytes, vtmp, vdst, stmp, nthreads=256):
    e(f"s_getpc_b64 s[{stmp}:{stmp+1}]")
    here = f"Lpc_{label}_{len(e.out)}"
    e.label(here)
    e(f"s_add_u32 s{stmp}, s{stmp}, {label}-{here}")
    e(f"s_addc_u32 s{stmp+1}, s{stmp+1}, ({label}-{here})>>32")
    e(f"v_lshlrev_b32 v{vtmp}, 6, v0")
    step = nthreads * 64
    n = (nbytes + step - 1) // step
    for i in range(n):
        e(f"v_min_u32 v{vtmp}, {nbytes-4}, v{vtmp}")
        e(f"global_load_dword v{vdst}, v{vtmp}, s[{stmp}:{stmp+1}]", tag="pf")
        e.vm[-1] = (set(), "pf")
        if i + 1 < n:
            e(f"v_add_u32 v{vtmp}, {step}, v{vtmp}")


def smod(e, d, n):
    e(f"s_cmp_ge_u32 s{d}, {n}")
    e(f"s_cselect_b32 s99, {n}, 0")
    e(f"s_sub_u32 s{d}, s{d}, s99")


def gen_prep(e):
    e.reset()
    e.label("prep_kernel")
    e("s_cmp_ge_u32 s2, 256")
    e("s_cbranch_scc1 Lp_end")
    e("s_load_dwordx4 s[40:43], s[0:1], 0")
    e("s_load_dwordx2 s[44:45], s[0:1], 16")
    e("s_load_dwordx8 s[48:55], s[0:1], 32")
    e("s_load_dwordx2 s[56:57], s[0:1], 80")
    e("v_lshrrev_b32 v1, 6, v0")
    e("v_readfirstlane_b32 s12, v1")
    e("v_and_b32 v2, 63, v0")
    e("v_lshlrev_b32 v3, 4, v2")
    e.wait(lg=0)
    srd(e, 4, 56, WS_BYTES)
    e("s_mul_i32 s13, s12, 7")
    e("s_cmp_ge_u32 s2, 202")
    e("s_cbranch_scc1 Lp_other")
    e("s_mov_b32 s17, 0")
    e("s_cmp_ge_u32 s2, 48")
    e("s_cbranch_scc1 Lp_not_qkv")
    srd(e, 8, 42, D * 3 * D * 2)
    e("s_movk_i32 s14, 2688")
    e("s_mov_b32 s15, 1")
    e("s_mov_b32 s17, 1")
    e("s_lshr_b32 s18, s2, 4")
    e("s_and_b32 s19, s2, 15")
    e("s_and_b32 s36, s2, 1")
    e("s_cmp_eq_u32 s36, 0")
    e("s_cselect_b32 s16, 0x75643120, s0")
    e("s_cselect_b32 s16, s16, 0x76431205")
    e("s_cmp_eq_u32 s18, 2")
    e("s_cselect_b32 s16, s16, 0x76543210")
    e("s_mul_i32 s36, s2, 56")
    e("s_mul_i32 s37, s19, 84")
    e("s_add_u32 s37, s37, s18")
    for i in range(7):
        e(f"s_add_u32 s38, s13, {i}")
        e(f"s_mul_i32 s{20+i}, s38, {16*2688}")
        e(f"s_add_u32 s{20+i}, s{20+i}, s36")
        e(f"s_mul_i32 s38, s38, 3")
        e(f"s_add_u32 s38, s38, s37")
        e(f"s_lshl_b32 s38, s38, 10")
        e(f"s_add_u32 s{28+i}, s38, {WQ_F}")
    e("s_branch Lp_tbl")
    e.label("Lp_not_qkv")
    e("s_cmp_ge_u32 s2, 90")
    e("s_cbranch_scc1 Lp_not_s1")
    e("s_movk_i32 s14, 896")
    e("s_cmp_ge_u32 s2, 62")
    e("s_cbranch_scc1 Lp_w12")
    srd(e, 8, 44, D * D * 2)
    e("s_sub_u32 s18, s2, 48")
    e(f"s_mov_b32 s19, {WO_F}")
    e("s_mov_b32 s15, 0")
    e("s_mov_b32 s35, 1")
    e("s_branch Lp_s1")
    e.label("Lp_w12")
    e("s_cmp_ge_u32 s2, 76")
    e("s_cbranch_scc1 Lp_w2")
    srd(e, 8, 48, D * D * 2)
    e("s_sub_u32 s18, s2, 62")
    e(f"s_mov_b32 s19, {W1_F}")
    e("s_mov_b32 s15, 1")
    e("s_mov_b32 s35, 1")
    e("s_branch Lp_s1")
    e.label("Lp_w2")
    srd(e, 8, 50, D * D * 2)
    e("s_sub_u32 s18, s2, 76")
    e(f"s_mov_b32 s19, {W2_F}")
    e("s_mov_b32 s15, 0")
    e("s_mov_b32 s35, 0")
    e.label("Lp_s1")
    e("s_lshl_b32 s36, s18, 6")
    e("s_lshr_b32 s37, s18, 1")
    e(f"s_mul_i32 s38, s37, {SLICE}")
    e("s_add_u32 s19, s19, s38")
    e("s_and_b32 s38, s18, 1")
    e("s_lshl_b32 s38, s38, 11")
    e("s_add_u32 s19, s19, s38")
    e("s_mul_i32 s37, s37, s35")
    e("s_lshl_b32 s37, s37, 1")
    e("s_sub_u32 s37, 14, s37")
    for i in range(7):
        e(f"s_add_u32 s38, s13, {i}")
        e(f"s_mul_i32 s{20+i}, s38, {16*896}")
        e(f"s_add_u32 s{20+i}, s{20+i}, s36")
        e("s_lshr_b32 s39, s38, 1")
        e("s_add_u32 s39, s39, s37")
        smod(e, 39, 14)
        e("s_lshl_b32 s39, s39, 12")
        e("s_and_b32 s38, s38, 1")
        e("s_lshl_b32 s38, s38, 9")
        e("s_add_u32 s38, s38, s39")
        e(f"s_add_u32 s{28+i}, s38, s19")
    e("v_bfe_u32 v4, v2, 2, 1")
    e("v_lshlrev_b32 v4, 10, v4")
    e("v_lshrrev_b32 v5, 5, v2")
    e("v_lshl_add_u32 v4, v5, 8, v4")
    e("v_bfe_u32 v5, v2, 3, 2")
    e("v_lshl_add_u32 v4, v5, 6, v4")
    e("v_and_b32 v5, 3, v2")
    e("v_lshl_add_u32 v4, v5, 4, v4")
    e("s_branch Lp_go")
    e.label("Lp_not_s1")
    e("s_cmp_ge_u32 s2, 146")
    e("s_cbranch_scc1 Lp_w4")
    srd(e, 8, 52, D * F * 2)
    e("s_movk_i32 s14, 3584")
    e("s_mov_b32 s15, 1")
    e("s_mov_b32 s16, 0x75643120")
    e("s_sub_u32 s18, s2, 90")
    e("s_lshl_b32 s36, s18, 6")
    e("s_lshr_b32 s37, s18, 3")
    e("s_lshl_b32 s37, s37, 2")
    e("s_sub_u32 s37, 28, s37")
    e("s_mul_i32 s19, s18, 28")
    for i in range(7):
        e(f"s_add_u32 s38, s13, {i}")
        e(f"s_mul_i32 s{20+i}, s38, {16*3584}")
        e(f"s_add_u32 s{20+i}, s{20+i}, s36")
        e("s_add_u32 s39, s38, s37")
        smod(e, 39, 28)
        e("s_add_u32 s39, s39, s19")
        e("s_lshl_b32 s39, s39, 10")
        e(f"s_add_u32 s{28+i}, s39, {W3_F}")
    e("s_branch Lp_tbl")
    e.label("Lp_w4")
    srd(e, 8, 54, D * F * 2)
    e("s_movk_i32 s14, 896")
    e("s_mov_b32 s15, 0")
    e("s_mov_b32 s16, 0x76543210")
    e("s_sub_u32 s18, s2, 146")
    e("s_mul_i32 s19, s18, 4682")
    e("s_lshr_b32 s19, s19, 16")
    e("s_mul_i32 s36, s19, 14")
    e("s_sub_u32 s18, s18, s36")
    e("s_lshl_b32 s36, s18, 6")
    e(f"s_mul_i32 s35, s19, {64*896}")
    e("s_add_u32 s36, s36, s35")
    e("s_lshr_b32 s37, s18, 1")
    e("s_lshl_b32 s35, s37, 2")
    e("s_add_u32 s35, s35, s19")
    e("s_mul_i32 s35, s35, 56")
    e("s_and_b32 s18, s18, 1")
    e("s_add_u32 s35, s35, s18")
    e("s_sub_u32 s37, 7, s37")
    for i in range(7):
        e(f"s_add_u32 s38, s13, {i}")
        e("s_lshr_b32 s39, s38, 2")
        e(f"s_mul_i32 s{20+i}, s39, {256*896}")
        e("s_and_b32 s58, s38, 3")
        e(f"s_mul_i32 s58, s58, {16*896}")
        e(f"s_add_u32 s{20+i}, s{20+i}, s58")
        e(f"s_add_u32 s{20+i}, s{20+i}, s36")
        e("s_add_u32 s39, s39, s37")
        smod(e, 39, 7)
        e("s_lshl_b32 s39, s39, 2")
        e("s_bfe_u32 s58, s38, 0x10001")
        e("s_mul_i32 s58, s58, 28")
        e("s_add_u32 s39, s39, s58")
        e("s_and_b32 s58, s38, 1")
        e("s_lshl_b32 s58, s58, 1")
        e("s_add_u32 s39, s39, s58")
        e("s_add_u32 s39, s39, s35")
        e("s_lshl_b32 s39, s39, 10")
        e(f"s_add_u32 s{28+i}, s39, {W4_F}")
    e.label("Lp_tbl")
    e("v_and_b32 v4, 28, v2")
    e("v_lshrrev_b32 v4, v4, s16")
    e("v_and_b32 v4, 7, v4")
    e("v_lshlrev_b32 v4, 6, v4")
    e("v_and_b32 v5, 35, v2")
    e("v_lshl_add_u32 v4, v5, 4, v4")
    e.label("Lp_go")
    e("v_lshrrev_b32 v5, 2, v2")
    e("v_mul_lo_u32 v5, v5, s14")
    e("v_and_b32 v6, 3, v2")
    e("v_lshl_add_u32 v5, v6, 4, v5")
    for i in range(7):
        e(f"buffer_load_dwordx4 {v(16+4*i,4)}, v5, s[8:11], s{20+i} offen")
    e("s_mul_i32 s36, s12, 7168")
    e("v_add_u32 v6, s36, v3")
    e("v_lshrrev_b32 v7, 5, v2")
    e("v_lshlrev_b32 v7, 9, v7")
    e("v_bfe_u32 v8, v2, 2, 2")
    e("v_lshl_add_u32 v7, v8, 6, v7")
    e("v_bfe_u32 v8, v2, 4, 1")
    e("v_lshl_add_u32 v7, v8, 5, v7")
    e("v_and_b32 v8, 3, v2")
    e("v_lshl_add_u32 v7, v8, 3, v7")
    e("v_add_u32 v7, s36, v7")
    for i in range(7):
        e(f"ds_write_b128 v6, {v(16+4*i,4)} offset:{1024*i}")
    e.wait(lg=0)
    for i in range(7):
        e(f"ds_read_b64_tr_b16 {v(16+4*i,2)}, v7 offset:{1024*i}")
        e(f"ds_read_b64_tr_b16 {v(18+4*i,2)}, v7 offset:{1024*i+256}")
    e.wait(lg=0)
    e("s_cmp_eq_u32 s15, 0")
    e("s_cbranch_scc1 Lp_store")
    for i in range(28):
        e(f"v_lshlrev_b32 v{48+2*i}, 16, v{16+i}")
        e(f"v_and_b32 v{49+2*i}, 0xffff0000, v{16+i}")
    e("v_pk_add_f32 v[8:9], v[48:49], v[50:51]")
    e("v_pk_add_f32 v[10:11], v[52:53], v[54:55]")
    for i in range(4, 28, 2):
        e(f"v_pk_add_f32 v[8:9], v[8:9], {v(48+2*i,2)}")
        e(f"v_pk_add_f32 v[10:11], v[10:11], {v(50+2*i,2)}")
    e("v_pk_add_f32 v[8:9], v[8:9], v[10:11]")
    e("v_add_f32 v8, v8, v9")
    e("v_lshlrev_b32 v9, 2, v0")
    e("ds_write_b32 v9, v8 offset:28672")
    e.wait(lg=0)
    e("s_barrier")
    e("v_and_b32 v9, 31, v2")
    e("v_lshlrev_b32 v9, 2, v9")
    for i in range(8):
        e(f"ds_read_b32 v{104+i}, v9 offset:{28672+128*i}")
    e("v_pk_add_f32 v[104:105], v[104:105], v[106:107]")
    e("v_pk_add_f32 v[108:109], v[108:109], v[110:111]")
    e("v_pk_add_f32 v[104:105], v[104:105], v[108:109]")
    e("v_add_f32 v8, v104, v105")
    e(f"v_mul_f32 v8, {hex(f2u(-1.0/448))}, v8")
    for i in range(28):
        e(f"v_pk_add_f32 {v(48+2*i,2)}, {v(48+2*i,2)}, v[8:9] op_sel_hi:[1,0]")
    for i in range(28):
        e(f"v_cvt_pk_bf16_f32 v{16+i}, v{48+2*i}, v{49+2*i}")
    e("s_cmp_eq_u32 s17, 0")
    e("s_cbranch_scc1 Lp_store")
    e("s_mov_b32 exec_lo, 0xf0000000")
    e("s_mov_b32 exec_hi, 0xf0000000")
    for i in range(28):
        e(f"v_mov_b32 v{16+i}, 0")
    e("s_mov_b64 exec, -1")
    e.label("Lp_store")
    e.settle()
    for i in range(7):
        e(f"buffer_store_dwordx4 {v(16+4*i,4)}, v4, s[4:7], s{28+i} offen")
    e("s_endpgm")
    e.reset()
    e.label("Lp_other")
    e("s_cmp_ge_u32 s2, 234")
    e("s_cbranch_scc1 Lp_init")
    srd(e, 8, 40, S * D * 2)
    e("s_sub_u32 s14, s2, 202")
    e("s_lshl_b32 s14, s14, 2")
    e("s_add_u32 s14, s14, s12")
    e(f"s_mul_i32 s15, s14, {16*896}")
    e(f"s_mul_i32 s16, s14, {BLK}")
    e(f"s_add_u32 s16, s16, {XU[0]}")
    e("v_and_b32 v4, 15, v2")
    e("v_mul_u32_u24 v5, 896, v4")
    e("v_lshrrev_b32 v6, 4, v2")
    e("v_lshl_add_u32 v5, v6, 4, v5")
    for kk in range(14):
        e(f"buffer_load_dwordx4 {v(16+4*kk,4)}, v5, s[8:11], s15 offen offset:{64*kk}")
    stat_addr(e, 7, 2, 8)
    for c in range(7):
        b = 16 + 8 * c
        e(f"buffer_store_dwordx4 {v(b,4)}, v3, s[4:7], s16 offen")
        e(f"buffer_store_dwordx4 {v(b+4,4)}, v3, s[4:7], s16 offen offset:1024")
        for i in range(8):
            e(f"v_lshlrev_b32 v{80+2*i}, 16, v{b+i}")
            e(f"v_and_b32 v{81+2*i}, 0xffff0000, v{b+i}")
        for x in stats16(80, 96):
            e(x)
        e("buffer_store_dword v96, v7, s[4:7], s16 offen offset:2048")
        e(f"s_add_u32 s16, s16, {PAIR}")
    e("s_endpgm")
    e.reset()
    e.label("Lp_init")
    e("s_cmp_ge_u32 s2, 250")
    e("s_cbranch_scc1 Lp_flags")
    e("s_sub_u32 s14, s2, 234")
    e("s_lshr_b32 s15, s14, 3")
    e("s_and_b32 s14, s14, 7")
    e(f"s_mul_i32 s15, s15, {LSZ}")
    e(f"s_mul_i32 s16, s14, {18*BLK}")
    e("s_add_u32 s15, s15, s16")
    e(f"s_add_u32 s15, s15, {L0+HU_O}")
    e("s_lshr_b32 s17, s12, 1")
    e("s_cmp_eq_u32 s17, 0")
    e(f"s_cselect_b32 s18, {14*16}, s0")
    e(f"s_cselect_b32 s18, s18, {17*BLK}")
    e("s_cselect_b32 s19, 0, 7")
    e("s_add_u32 s15, s15, s18")
    e("s_cmp_eq_u32 s14, s19")
    e("s_cselect_b32 s19, 0, -1")
    e("v_and_b32 v4, 127, v0")
    e("v_min_u32 v4, 111, v4")
    e("v_lshrrev_b32 v5, 4, v4")
    e(f"v_mul_u32_u24 v5, {PAIR}, v5")
    e("v_bfe_u32 v6, v4, 1, 3")
    e("v_lshl_add_u32 v5, v6, 8, v5")
    e("v_and_b32 v6, 1, v4")
    e("v_lshl_add_u32 v5, v6, 4, v5")
    for i in range(4):
        e(f"v_mov_b32 v{8+i}, s19")
    e("buffer_store_dwordx4 v[8:11], v5, s[4:7], s15 offen")
    e("s_endpgm")
    e.reset()
    e.label("Lp_flags")
    e("s_sub_u32 s14, s2, 250")
    e("s_lshl_b32 s14, s14, 14")
    e(f"s_add_u32 s14, s14, {FLG}")
    e("v_lshlrev_b32 v5, 4, v0")
    for i in range(4):
        e(f"v_mov_b32 v{8+i}, 0")
    for i in range(4):
        e("buffer_store_dwordx4 v[8:11], v5, s[4:7], s14 offen")
        e("s_add_u32 s14, s14, 4096")
    e(f"s_mov_b32 s14, {HS}")
    e("v_and_b32 v5, 2047, v5")
    e("buffer_store_dwordx4 v[8:11], v5, s[4:7], s14 offen")
    e.label("Lp_end")
    e("s_endpgm")


import struct
def f2u(x):
    return struct.unpack("<I", struct.pack("<f", x))[0]
def fl(x):
    return hex(f2u(x))


def stat_addr(e, d, lane, t):
    e(f"v_lshrrev_b32 v{d}, 5, v{lane}")
    e(f"v_lshlrev_b32 v{d}, 7, v{d}")
    e(f"v_and_b32 v{t}, 15, v{lane}")
    e(f"v_lshl_add_u32 v{d}, v{t}, 3, v{d}")
    e(f"v_bfe_u32 v{t}, v{lane}, 4, 1")
    e(f"v_lshl_add_u32 v{d}, v{t}, 2, v{d}")


def stats16(x, t):
    o = []
    o.append(f"v_pk_add_f32 {v(t,2)}, {v(x,2)}, {v(x+2,2)}")
    o.append(f"v_pk_mul_f32 {v(t+2,2)}, {v(x,2)}, {v(x,2)}")
    o.append(f"v_pk_add_f32 {v(t+4,2)}, {v(x+4,2)}, {v(x+6,2)}")
    o.append(f"v_pk_mul_f32 {v(t+6,2)}, {v(x+2,2)}, {v(x+2,2)}")
    for i in range(4, 8, 2):
        o.append(f"v_pk_add_f32 {v(t,2)}, {v(t,2)}, {v(x+2*i,2)}")
        o.append(f"v_pk_fma_f32 {v(t+2,2)}, {v(x+2*i-4,2)}, {v(x+2*i-4,2)}, {v(t+2,2)}")
        o.append(f"v_pk_add_f32 {v(t+4,2)}, {v(t+4,2)}, {v(x+2*i+2,2)}")
        o.append(f"v_pk_fma_f32 {v(t+6,2)}, {v(x+2*i-2,2)}, {v(x+2*i-2,2)}, {v(t+6,2)}")
    o.append(f"v_pk_fma_f32 {v(t+2,2)}, {v(x+12,2)}, {v(x+12,2)}, {v(t+2,2)}")
    o.append(f"v_pk_fma_f32 {v(t+6,2)}, {v(x+14,2)}, {v(x+14,2)}, {v(t+6,2)}")
    o.append(f"v_pk_add_f32 {v(t,2)}, {v(t,2)}, {v(t+4,2)}")
    o.append(f"v_pk_add_f32 {v(t+2,2)}, {v(t+2,2)}, {v(t+6,2)}")
    o.append(f"v_add_f32 v{t}, v{t}, v{t+1}")
    o.append(f"v_add_f32 v{t+2}, v{t+2}, v{t+3}")
    o.append(f"v_permlane32_swap_b32 v{t}, v{t+2}")
    o.append(f"v_add_f32 v{t}, v{t}, v{t+2}")
    return o
```

```python
S, D, H, DH, F = 2048, 448, 16, 28, 1792
PAIR = 2304
BLK = 7 * PAIR
WS_BYTES = 268435456

_off = [0]
def _alloc(n, al=4096):
    o = (_off[0] + al - 1) // al * al
    _off[0] = o + n
    return o

SLICE = 57344
WO_F = _alloc(7 * SLICE)
W1_F = _alloc(7 * SLICE)
W2_F = _alloc(7 * SLICE)
W3_F = _alloc(28 * SLICE)
W4_F = _alloc(28 * SLICE)
WQ_F = _alloc(16 * 84 * 1024)
W_END = _off[0]
XU = [_alloc(128 * BLK), _alloc(128 * BLK)]
OU = _alloc(128 * BLK)
QB = _alloc(16 * 64 * 2048)
KVB = _alloc(16 * 64 * 4096)
L0 = _alloc(0)
YU_O = 0
X1U_O = YU_O + 128 * BLK
HU_O = X1U_O + 128 * BLK
G_O = HU_O + 8 * 18 * BLK
LSZ = (G_O + 32 * 224 * 1024 + 4095) // 4096 * 4096
_alloc(2 * LSZ)
FLG = _alloc(2 * 768 * 64)
FY_O, FH_O, FX1_O, FX_O, FG_O = 0, 128 * 64, 256 * 64, 384 * 64, 512 * 64
FSZ = 768 * 64
HS = _alloc(2 * 8 * 128)
STAMP = _alloc(1 << 20)
END = _off[0]
```
